```python
import torch

def _softmax(x, axis=-1):
    return torch.softmax(x, dim=axis)
def _gelu(x):
    return torch.nn.functional.gelu(x, approximate="tanh")
def _silu(x):
    return torch.nn.functional.silu(x)
def _sigmoid(x):
    return torch.sigmoid(x)
def _layernorm(x, axis=-1, eps=1e-5):
    m = x.mean(dim=axis, keepdim=True)
    v = x.var(dim=axis, keepdim=True, unbiased=False)
    return (x - m) / torch.sqrt(v + eps)
def _scatter_add(tgt, idx, src, axis=0):
    return tgt.clone().index_add_(axis, idx, src)
def _segment_sum(src, seg, n):
    out = torch.zeros((n,) + src.shape[1:], dtype=src.dtype)
    return out.index_add_(0, seg, src)
def _pad(x, pw):
    flat = tuple(v for pair in reversed(pw) for v in pair)
    return torch.nn.functional.pad(x, flat)

kernel_name = 'recurrent_scan__spectral_fnet__glu_gated_glu__prompt'

def setup_inputs():

    _w = (lambda a: (lambda t: t.to(torch.bfloat16) if t.is_floating_point() else t)(torch.as_tensor(a)))
    def _A_setup():
        B, S, D = 1, 2048, 512
        ns = torch.arange(S)[:, None] * torch.arange(S)[None, :]
        nd = torch.arange(D)[:, None] * torch.arange(D)[None, :]
        Ws_re = torch.cos(-2.0 * torch.pi * ns / S).to(float)
        Ws_im = torch.sin(-2.0 * torch.pi * ns / S).to(float)
        Wd_re = torch.cos(-2.0 * torch.pi * nd / D).to(float)
        Wd_im = torch.sin(-2.0 * torch.pi * nd / D).to(float)
        return {
            "x": _w((lambda *s: torch.randn(*s, dtype=torch.bfloat16) * 0.05)(B, S, D)),
            "dft_seq_re": _w(Ws_re),
            "dft_seq_im": _w(Ws_im),
            "dft_hid_re": _w(Wd_re),
            "dft_hid_im": _w(Wd_im),
        }
    _A_in = _A_setup()

    def _B_setup():
        B, S, D, F = 1, 2048, 512, 1792
        return {
            "x": _w((lambda *s: torch.randn(*s, dtype=torch.bfloat16) * 0.05)(B, S, D)),
            "w_gate": _w((lambda *s: torch.randn(*s, dtype=torch.bfloat16) * 0.05)(D, F)),
            "w_up": _w((lambda *s: torch.randn(*s, dtype=torch.bfloat16) * 0.05)(D, F)),
            "w_down": _w((lambda *s: torch.randn(*s, dtype=torch.bfloat16) * 0.05)(F, D)),
        }
    _B_in = _B_setup()

    return {
        "A_x": _A_in["x"],
        "A_dft_seq_re": _A_in["dft_seq_re"],
        "A_dft_seq_im": _A_in["dft_seq_im"],
        "A_dft_hid_re": _A_in["dft_hid_re"],
        "A_dft_hid_im": _A_in["dft_hid_im"],
        "B_x": _B_in["x"],
        "B_w_gate": _B_in["w_gate"],
        "B_w_up": _B_in["w_up"],
        "B_w_down": _B_in["w_down"],
    }

def reference(A_x, A_dft_seq_re, A_dft_seq_im, A_dft_hid_re, A_dft_hid_im, B_x, B_w_gate, B_w_up, B_w_down):
    def _A_ref(x, dft_seq_re, dft_seq_im, dft_hid_re, dft_hid_im):
        a = torch.einsum("bsd,ed->bse", x, dft_hid_re)
        b = torch.einsum("bsd,ed->bse", x, dft_hid_im)
        y = torch.einsum("ts,bse->bte", dft_seq_re, a) - torch.einsum("ts,bse->bte", dft_seq_im, b)
        return y

    def _B_ref(x, w_gate, w_up, w_down):
        g = torch.einsum("bsd,df->bsf", x, w_gate)
        u = torch.einsum("bsd,df->bsf", x, w_up)
        h = _sigmoid(g) * u
        return torch.einsum("bsf,fd->bsd", h, w_down)

    x = A_x
    xn = _layernorm(x, axis=-1)
    s = _A_ref(xn, A_dft_seq_re, A_dft_seq_im, A_dft_hid_re, A_dft_hid_im)
    g = _silu(_B_ref(xn, B_w_gate, B_w_up, B_w_down))
    return x + s * g
```

```python
import re


class Emit:
    def __init__(self):
        self.lines = []
        self.vm = 0
        self.vm_done = -1
        self.lg = 0
        self.lg_done = -1

    def fork(self):
        e = Emit()
        e.vm, e.vm_done, e.lg, e.lg_done = self.vm, self.vm_done, self.lg, self.lg_done
        return e

    def I(self, s):
        self.lines.append("    " + s)

    def C(self, s):
        self.lines.append("    ; " + s)

    def L(self, s):
        self.lines.append(s + ":")

    def vmem(self, s):
        if self.vm - 1 - self.vm_done >= 60:
            self._wait(self.vm - 50, None)
        self.I(s)
        self.vm += 1
        return self.vm - 1

    def lds(self, s):
        if self.lg - 1 - self.lg_done >= 15:
            self._wait(None, self.lg - 10)
        self.I(s)
        self.lg += 1
        return self.lg - 1

    def _wait(self, vid, lid):
        parts = []
        if vid is not None and vid > self.vm_done:
            n = self.vm - 1 - vid
            assert n >= 0
            n = min(n, 63)
            parts.append(f"vmcnt({n})")
            self.vm_done = self.vm - 1 - n
        if lid is not None and lid > self.lg_done:
            n = self.lg - 1 - lid
            assert n >= 0
            n = min(n, 15)
            parts.append(f"lgkmcnt({n})")
            self.lg_done = self.lg - 1 - n
        if parts:
            self.I("s_waitcnt " + " ".join(parts))

    def wait(self, vm=None, lg=None):
        self._wait(vm, lg)

    def wait_all(self, vm=True, lg=True):
        parts = []
        if vm:
            parts.append("vmcnt(0)")
            self.vm_done = self.vm - 1
        if lg:
            parts.append("lgkmcnt(0)")
            self.lg_done = self.lg - 1
        self.I("s_waitcnt " + " ".join(parts))

    def text(self):
        return "\n".join(self.lines) + "\n"


_REG = re.compile(r"^(-|\|)?([vas])(\d+)\|?$|^(-)?([vas])\[(\d+):(\d+)\]$")


def regs_of(op):
    op = op.strip()
    m = re.match(r"^-?\|?(?:abs\()?([vas])(\d+)\)?\|?$", op)
    if m:
        return [(m.group(1), int(m.group(2)))]
    m = re.match(r"^-?([vas])\[(\d+):(\d+)\]$", op)
    if m:
        return [(m.group(1), i) for i in range(int(m.group(2)), int(m.group(3)) + 1)]
    if op == "vcc":
        return [("s", "vcc")]
    if op == "m0":
        return [("s", "m0")]
    if op == "exec":
        return [("s", "exec")]
    return []


TRANS = ("v_exp_f32", "v_log_f32", "v_rcp_f32", "v_rsq_f32", "v_sqrt_f32", "v_sin_f32", "v_cos_f32")


def parse(line):
    s = line.split(";")[0].strip()
    if not s or s.endswith(":") or s.startswith("."):
        return None
    parts = s.split(None, 1)
    mn = parts[0]
    mn = re.sub(r"_e(32|64)$", "", mn)
    rest = parts[1] if len(parts) > 1 else ""
    ops = [o.strip() for o in rest.split(",")] if rest else []
    if ops:
        last = ops[-1].split()
        mods = last[1:]
        ops[-1] = last[0] if last else ""
    else:
        mods = []
    d = dict(mn=mn, ops=ops, mods=mods, text=s)
    rd, wr = [], []
    kind = "other"
    if mn.startswith("v_mfma"):
        kind = "mfma"
        wr = regs_of(ops[0])
        d["A"], d["B"], d["Cc"] = regs_of(ops[1]), regs_of(ops[2]), regs_of(ops[3])
        rd = d["A"] + d["B"] + d["Cc"]
    elif mn.startswith("v_"):
        kind = "valu"
        if mn.startswith("v_cmp"):
            wr = regs_of(ops[0])
            rd = sum((regs_of(o) for o in ops[1:]), [])
        elif mn.startswith("v_permlane32_swap") or mn.startswith("v_permlane16_swap"):
            wr = regs_of(ops[0]) + regs_of(ops[1])
            rd = list(wr)
        else:
            wr = regs_of(ops[0])
            rd = sum((regs_of(o) for o in ops[1:]), [])
            if mn.startswith("v_dot2c") or mn.startswith("v_fmac"):
                rd += wr
    elif mn.startswith("ds_"):
        kind = "ds"
        if mn.startswith("ds_read") or mn.startswith("ds_bpermute"):
            wr = regs_of(ops[0])
            rd = sum((regs_of(o) for o in ops[1:]), [])
        else:
            rd = sum((regs_of(o) for o in ops), [])
    elif mn.startswith("buffer_"):
        kind = "vmem"
        if "lds" in mods:
            rd = sum((regs_of(o) for o in ops), []) + [("s", "m0")]
            d["dma"] = True
        elif mn.startswith("buffer_load"):
            wr = regs_of(ops[0])
            rd = sum((regs_of(o) for o in ops[1:]), [])
        else:
            rd = sum((regs_of(o) for o in ops), [])
            d["data"] = regs_of(ops[0])
    elif mn.startswith("s_"):
        kind = "salu"
        if mn in ("s_waitcnt", "s_barrier", "s_nop", "s_endpgm", "s_sleep", "s_branch", "s_setprio") or mn.startswith("s_cbranch"):
            pass
        elif mn.startswith("s_cmp"):
            rd = sum((regs_of(o) for o in ops), [])
        else:
            wr = regs_of(ops[0])
            rd = sum((regs_of(o) for o in ops[1:]), [])
    d.update(kind=kind, rd=set(rd), wr=set(wr))
    d["states"] = (int(ops[0]) + 1) if mn == "s_nop" else 1
    return d


def check_hazards(lines, name=""):
    ins = [p for p in (parse(l) for l in lines) if p]
    errs = []
    n = len(ins)
    for i, a in enumerate(ins):
        dist = 0
        for j in range(i + 1, min(n, i + 24)):
            b = ins[j]
            need = 0
            why = ""
            vw = {r for r in a["wr"] if r[0] in "va"}
            sw = {r for r in a["wr"] if r[0] == "s"}
            if a["kind"] == "valu":
                if b["kind"] == "mfma" and vw & b["rd"]:
                    need, why = 2, "valu->mfma"
                if a["mn"] in TRANS and b["kind"] == "valu" and b["mn"] not in TRANS and vw & b["rd"]:
                    need, why = max(need, 1), "trans->valu"
                if a["mn"].startswith("v_dot2") and b["kind"] in ("valu", "mfma", "ds", "vmem"):
                    if vw & (b["rd"] | b["wr"]):
                        same_acc = b["mn"] == a["mn"] and b["wr"] == vw and not (vw & set(sum((regs_of(o) for o in b["ops"][1:]), [])))
                        if not same_acc:
                            need, why = max(need, 3), "dot->other"
                if b["mn"].startswith("v_permlane") and vw & b["rd"]:
                    need, why = max(need, 2), "valu->permlane"
                if b["mn"] in ("v_readfirstlane_b32", "v_readlane_b32") and vw & b["rd"]:
                    need, why = max(need, 1), "valu->readlane"
                if sw and b["kind"] == "vmem" and sw & b["rd"]:
                    need, why = max(need, 5), "valu sgpr->vmem"
                if sw and b["kind"] == "valu" and sw & b["rd"]:
                    need, why = max(need, 2), "valu sgpr->valu"
                if sw and b["kind"] == "salu" and sw & b["rd"] and ("s", "vcc") not in sw:
                    need, why = max(need, 1), "valu sgpr->salu (pad)"
            if a["kind"] == "mfma":
                if b["kind"] == "mfma":
                    if vw & (set(b["A"]) | set(b["B"])):
                        need, why = 12, "mfma->mfma AB"
                    elif vw & set(b["Cc"]) and set(b["Cc"]) != vw:
                        need, why = 10, "mfma->mfma C partial"
                elif b["kind"] in ("valu", "ds", "vmem") and vw & (b["rd"] | b["wr"]):
                    need, why = 12, "mfma->other"
                if b["kind"] == "valu" and set(a["Cc"]) & b["wr"]:
                    need, why = max(need, 7), "mfma C WAR"
            if a["kind"] == "salu" and ("s", "m0") in a["wr"] and b.get("dma"):
                need, why = max(need, 1), "m0->dma"
            if a["kind"] == "vmem" and a.get("data") and len(a["data"]) >= 3 and b["kind"] in ("valu",) and set(a["data"]) & b["wr"]:
                need, why = max(need, 2), "store data WAR"
            if need > dist:
                errs.append(f"{name}: [{i}] '{a['text']}' -> [{j}] '{b['text']}': {why} need {need} have {dist}")
            dist += b["states"]
            if dist >= 12:
                break
    return errs
```

```python
import sys, os
sys.path.insert(0, os.path.join(os.path.dirname(os.path.abspath(__file__)), "lib"))
from emit import Emit, check_hazards

NAME = "recurrent_scan__spectral_fnet__glu_gated_glu__prompt_kernel"

CFG = dict(
    LA=6,
    NB=8,
    KPOLL=9,
    KPOLLY=21,
    STAMP=0,
    SPIN=60000,
)

WS_TAG = 0
WS_FLAG = 0x1000
WS_FLAGD = 0x3000
WS_STAMP = 0x4000
WS_H = 0x20000
WS_Y = 0x800000
WS_SIZE = 0xA00000

sX, sA1, sA2, sWD, sWS, sOUT, sSRE, sSIM, sDBG, sCODE = 4, 8, 12, 16, 20, 24, 28, 32, 36, 40
sKA = 44
sW, sRB, sCG, sROT, sHH, sEG, sROT2, sTAG, sMASK, sONES, sRB2 = 68, 69, 70, 71, 72, 73, 74, 75, 76, 77, 78
sSPIN = 79
sCI = 80
sT0, sT1, sT2, sT3 = 94, 95, 96, 97
sB0, sB1 = 98, 99
sWDB, sHB = 100, 101
sXROW, sXLDS, sSLOT, sXCD = 44, 45, 46, 47
sLDSW = 48
sWDL, sHL = 49, 50
sOUTB = 51
sY0, sY1 = 52, 53
sPI = 54
sHST = 55
sFLG = 56
sSGN = 57
sST = 62

vLANE = 0
vXo = (1, 2)
vXa = (3, 4, 5, 6)
vWo = (7, 8)
vWa = (9, 10, 11, 12)
vWdo = (13, 14)
vHo = (15, 16)
vM, vR, vK1 = 17, 18, 19
vST = (20, 21, 22, 23)
vT = 24
vRR = 40
vWdA = (56, 57)
vHA, vFO, vOO, vYO = 58, 59, 60, 61
vL16, vP = 62, 63
vACC = 64
vXC = 128
aACC = 0
aFR = 64
aCC = 96
aB2 = 240

LDS_X = 32768
LDS_WD = 65536


def vr(b, n=4):
    return f"v[{b}:{b+n-1}]"


def ar(b, n=4):
    return f"a[{b}:{b+n-1}]"


def sr(b, n=4):
    return f"s[{b}:{b+n-1}]"


def srd(e, d, lo, size):
    e.I(f"s_mov_b32 s{d}, s{lo}")
    e.I(f"s_mov_b32 s{d+1}, s{lo+1}")
    e.I(f"s_mov_b32 s{d+2}, {size:#x}")
    e.I(f"s_mov_b32 s{d+3}, 0x20000")


class Gen:
    def __init__(self, cfg):
        self.c = cfg
        self.nstamp = 0
        self.lab = 0

    def label(self, p):
        self.lab += 1
        return f"L_{p}_{self.lab}"

    def stamp(self, e, idx):
        if not self.c["STAMP"]:
            return
        e.I(f"s_memtime s[{sST}:{sST+1}]")
        e.I("s_waitcnt lgkmcnt(0)")
        e.lg_done = e.lg - 1
        e.I(f"v_writelane_b32 v{self.vSTAMP}, s{sST}, {idx}")

    vSTAMP = 39

    def prologue(self, e):
        c = self.c
        e.I("s_cmp_ge_u32 s2, 0x100")
        e.I("s_cbranch_scc1 L_end")
        e.I(f"s_load_dwordx16 s[{sKA}:{sKA+15}], s[0:1], 0")
        e.I(f"s_load_dwordx8 s[{sKA+16}:{sKA+23}], s[0:1], 64")
        if c["STAMP"]:
            e.I(f"s_memtime s[{sT2}:{sT3}]")
        e.I("v_lshrrev_b32 v1, 6, v0")
        e.I("v_and_b32 v0, 63, v0")
        e.I(f"v_readfirstlane_b32 s{sW}, v1")
        e.I(f"s_and_b32 s3, s2, 7")
        e.I(f"s_lshr_b32 s{sT0}, s2, 3")
        e.I(f"s_and_b32 s{sRB}, s3, 3")
        e.I(f"s_lshl_b32 s{sRB}, s{sRB}, 2")
        e.I(f"s_and_b32 s{sT1}, s{sT0}, 3")
        e.I(f"s_add_u32 s{sRB}, s{sRB}, s{sT1}")
        e.I(f"s_lshr_b32 s{sCG}, s3, 2")
        e.I(f"s_lshl_b32 s{sCG}, s{sCG}, 3")
        e.I(f"s_lshr_b32 s{sROT2}, s{sT0}, 2")
        e.I(f"s_add_u32 s{sCG}, s{sCG}, s{sROT2}")
        e.I(f"s_lshl_b32 s{sROT}, s{sT1}, 1")
        e.I(f"s_and_b32 s{sT1}, s3, 1")
        e.I(f"s_add_u32 s{sROT}, s{sROT}, s{sT1}")
        e.I(f"s_add_u32 s{sROT}, s{sROT}, s{sCG}")
        e.I(f"s_and_b32 s{sROT}, s{sROT}, 7")
        e.I(f"s_mov_b32 s{sRB2}, s{sRB}")
        e.I(f"s_and_b32 s{sHH}, s{sROT2}, 1")
        e.I(f"s_lshr_b32 s{sEG}, s3, 2")
        e.I(f"s_lshl_b32 s{sEG}, s{sEG}, 2")
        e.I(f"s_lshr_b32 s{sT1}, s{sT0}, 3")
        e.I(f"s_add_u32 s{sEG}, s{sEG}, s{sT1}")
        e.I(f"s_lshl_b32 s{sROT2}, s{sT1}, 2")
        e.I(f"s_and_b32 s{sT1}, s{sT0}, 7")
        e.I(f"s_lshl_b32 s{sT1}, s{sT1}, 1")
        e.I(f"s_add_u32 s{sROT2}, s{sROT2}, s{sT1}")
        e.I(f"s_cmp_ge_u32 s{sROT2}, 14")
        e.I(f"s_cselect_b32 s{sT1}, 14, 0")
        e.I(f"s_sub_u32 s{sROT2}, s{sROT2}, s{sT1}")
        e.I(f"s_mov_b32 s{sB0}, s{sT0}")
        e.I("v_lshrrev_b32 v24, 3, v0")
        e.I("v_and_b32 v25, 7, v0")
        e.I("v_lshrrev_b32 v26, 1, v24")
        e.I("v_xor_b32 v26, v26, v25")
        e.I("v_lshlrev_b32 v26, 4, v26")
        e.I(f"v_lshl_add_u32 v{vXo[0]}, v24, 17, v26")
        e.I(f"v_xor_b32 v{vXo[1]}, 64, v{vXo[0]}")
        e.I(f"v_add_u32 v{vXo[1]}, 0x100000, v{vXo[1]}")
        e.I("s_waitcnt lgkmcnt(0)")
        srd(e, sX, sKA + 0, 0x200000)
        srd(e, sWS, sKA + 22, WS_SIZE)
        e.I(f"s_or_b32 s{sT1}, s2, s{sW}")
        e.I(f"s_cmp_lg_u32 s{sT1}, 0")
        e.I("s_cbranch_scc1 L_notag0")
        e.I(f"buffer_load_dword v{vP}, off, {sr(sWS)}, 0 sc1")
        e.L("L_notag0")
        e.I(f"s_lshl_b32 s{sT1}, s{sW}, 5")
        e.I(f"s_add_u32 s{sT1}, s{sT1}, s{sRB}")
        e.I(f"s_lshl_b32 s{sB1}, s{sT1}, 10")
        e.I(f"s_lshl_b32 s{sT1}, s{sW}, 15")
        e.I(f"s_add_u32 m0, s{sT1}, {LDS_X}")
        self.xid = []
        for q in range(8):
            e.I(f"s_add_u32 s{sT0}, s{sROT}, {q}")
            e.I(f"s_and_b32 s{sT0}, s{sT0}, 7")
            e.I(f"s_lshl_b32 s{sT0}, s{sT0}, 7")
            e.I(f"s_add_u32 s{sT0}, s{sT0}, s{sB1}")
            e.I(f"s_add_u32 s{sT1}, s{sT0}, 0x4000")
            for j in range(4):
                i = e.vmem(f"buffer_load_dwordx4 v{vXo[j&1]}, {sr(sX)}, s{sT1 if j>>1 else sT0} offen lds")
                e.I("s_addk_i32 m0, 0x400")
                if j < 3:
                    e.I("s_nop 0")
            self.xid.append(i)
        e.I(f"s_getpc_b64 s[{sCODE}:{sCODE+1}]")
        e.L("L_pc")
        e.I(f"s_mov_b32 s{sCODE+2}, L_end-L_pc")
        e.I(f"s_mov_b32 s{sCODE+3}, 0x20000")
        e.I(f"v_and_b32 v24, 31, v{vLANE}")
        e.I(f"v_lshlrev_b32 v24, 7, v24")
        e.I(f"s_lshl_b32 s{sT0}, s{sB0}, 12")
        e.I(f"s_cmp_lg_u32 s{sW}, 3")
        e.I(f"s_cbranch_scc1 L_nopf")
        e.I(f"buffer_load_dword v38, v24, {sr(sCODE)}, s{sT0} offen")
        e.L("L_nopf")
        srd(e, sWD, sKA + 16, 1792 * 512 * 2)
        srd(e, sOUT, sKA + 18, 0x200000)
        srd(e, sDBG, sKA + 20, 256)
        srd(e, sSRE, sKA + 2, 0x800000)
        srd(e, sSIM, sKA + 4, 0x800000)
        e.I(f"s_mov_b32 s{sMASK}, 0xffff0000")
        e.I(f"s_mov_b32 s{sONES}, 0x3f803f80")
        e.I(f"s_cmp_ge_u32 s{sCG}, 14")
        e.I("s_cbranch_scc1 L_dft")

    def common_setup(self, e):
        c = self.c
        e.I(f"s_mov_b32 s{sSLOT}, s{sB0}")
        if c["STAMP"]:
            e.I(f"v_writelane_b32 v{self.vSTAMP}, s{sT2}, 0")
        lab = self.label("notag")
        e.I(f"s_or_b32 s{sT1}, s2, s{sW}")
        e.I(f"s_cmp_lg_u32 s{sT1}, 0")
        e.I(f"s_cbranch_scc1 {lab}")
        e.I(f"s_waitcnt vmcnt({min(e.vm, 63)})")
        e.I(f"v_add_u32 v{vP}, 1, v{vP}")
        e.I(f"v_max_u32 v{vP}, 1, v{vP}")
        e.I(f"buffer_store_dword v{vP}, off, {sr(sWS)}, 0 sc1")
        e.I(f"buffer_store_dword v{vP}, off, {sr(sDBG)}, 0 sc1")
        e.L(lab)
        e.I(f"s_lshl_b32 s{sLDSW}, s{sW}, 11")
        for k in range(14):
            e.I(f"s_add_u32 s{sT0}, s{sROT2}, {k}")
            e.I(f"s_cmp_ge_u32 s{sT0}, 14")
            e.I(f"s_cselect_b32 s{sT1}, 14, 0")
            e.I(f"s_sub_u32 s{sT0}, s{sT0}, s{sT1}")
            e.I(f"s_lshl_b32 s{sCI+k}, s{sT0}, 17")
        e.I(f"s_lshl_b32 s{sWDB}, s{sW}, 14")
        e.I(f"s_lshl_b32 s{sT0}, s{sEG}, 7")
        e.I(f"s_add_u32 s{sWDB}, s{sWDB}, s{sT0}")
        e.I(f"s_lshl_b32 s{sT0}, s{sRB2}, 1")
        e.I(f"s_add_u32 s{sT0}, s{sT0}, s{sHH}")
        e.I(f"s_mul_i32 s{sT0}, s{sT0}, 224")
        e.I(f"s_add_u32 s{sT0}, s{sT0}, s{sW}")
        e.I(f"s_lshl_b32 s{sT0}, s{sT0}, 10")
        e.I(f"s_add_u32 s{sHB}, s{sT0}, {WS_H:#x}")
        e.I(f"s_mul_i32 s{sWDL}, s{sW}, 24576")
        e.I(f"s_add_u32 s{sWDL}, s{sWDL}, {LDS_WD}")
        e.I(f"s_lshl_b32 s{sHL}, s{sW}, 14")
        e.I(f"v_lshlrev_b32 v{vL16}, 4, v{vLANE}")
        e.I(f"v_lshrrev_b32 v24, 3, v{vLANE}")
        e.I(f"v_and_b32 v25, 7, v{vLANE}")
        e.I(f"v_and_b32 v26, 2, v24")
        e.I(f"v_lshlrev_b32 v26, 1, v26")
        e.I(f"v_xor_b32 v25, v25, v26")
        e.I(f"v_lshlrev_b32 v25, 4, v25")
        e.I(f"v_lshl_add_u32 v{vWdo[0]}, v24, 10, v25")
        e.I(f"v_add_u32 v{vWdo[1]}, 0x2000, v{vWdo[0]}")
        e.I(f"s_lshr_b32 s{sT0}, s{sW}, 1")
        e.I(f"s_mul_i32 s{sT1}, s{sT0}, 114688")
        e.I(f"v_add_u32 v{vHo[0]}, s{sT1}, v{vL16}")
        e.I(f"s_sub_u32 s{sT1}, 114688, s{sT1}")
        e.I(f"v_add_u32 v{vHo[1]}, s{sT1}, v{vL16}")
        e.I(f"v_add_u32 v{vHA}, s{sHL}, v{vL16}")
        e.I(f"v_lshrrev_b32 v24, 5, v{vLANE}")
        e.I(f"v_bfe_u32 v25, v{vLANE}, 2, 2")
        e.I(f"v_lshl_add_u32 v26, v24, 2, v25")
        e.I(f"v_lshlrev_b32 v26, 7, v26")
        e.I(f"v_bfe_u32 v27, v{vLANE}, 3, 1")
        e.I(f"s_and_b32 s{sT1}, s{sW}, 1")
        e.I(f"v_xor_b32 v27, s{sT1}, v27")
        e.I(f"v_lshl_add_u32 v26, v27, 6, v26")
        e.I(f"v_and_b32 v27, 1, v{vLANE}")
        e.I(f"v_lshl_add_u32 v26, v27, 5, v26")
        e.I(f"v_bfe_u32 v27, v{vLANE}, 4, 1")
        e.I(f"v_lshl_add_u32 v26, v27, 4, v26")
        e.I(f"v_bfe_u32 v27, v{vLANE}, 1, 1")
        e.I(f"v_lshl_add_u32 v26, v27, 3, v26")
        e.I(f"v_add_u32 v{vWdA[0]}, s{sWDL}, v26")
        e.I(f"v_xor_b32 v{vWdA[1]}, 64, v{vWdA[0]}")
        e.I(f"v_min_u32 v{vFO}, 13, v{vLANE}")
        e.I(f"v_lshlrev_b32 v{vFO}, 2, v{vFO}")
        e.I(f"v_and_b32 v25, 15, v{vLANE}")
        e.I(f"v_bfe_u32 v26, v{vLANE}, 4, 1")
        e.I(f"v_lshlrev_b32 v27, 17, v25")
        e.I(f"v_lshl_add_u32 v27, v26, 14, v27")
        e.I(f"v_lshl_add_u32 v{vOO}, v24, 5, v27")
        e.I(f"s_lshl_b32 s{sT2}, s{sHH}, 1")
        e.I(f"s_add_u32 s{sT2}, s{sT2}, s{sT0}")
        e.I(f"s_lshl_b32 s{sT2}, s{sT2}, 5")
        e.I(f"s_add_u32 s{sT2}, s{sT2}, s{sRB2}")
        e.I(f"s_lshl_b32 s{sOUTB}, s{sT2}, 10")
        e.I(f"s_lshl_b32 s{sT3}, s{sEG}, 7")
        e.I(f"s_add_u32 s{sOUTB}, s{sOUTB}, s{sT3}")
        e.I(f"s_lshl_b32 s{sT3}, s{sT1}, 6")
        e.I(f"s_add_u32 s{sOUTB}, s{sOUTB}, s{sT3}")
        e.I(f"s_lshl_b32 s{sT3}, s{sEG}, 1")
        e.I(f"s_add_u32 s{sT3}, s{sT3}, s{sT1}")
        e.I(f"s_lshl_b32 s{sT3}, s{sT3}, 5")
        e.I(f"v_and_b32 v27, 3, v{vLANE}")
        e.I(f"v_bfe_u32 v28, v{vLANE}, 2, 1")
        e.I(f"v_lshl_add_u32 v27, v28, 4, v27")
        e.I(f"v_bfe_u32 v28, v{vLANE}, 3, 2")
        e.I(f"v_lshl_add_u32 v27, v28, 2, v27")
        e.I(f"v_add_u32 v27, s{sT3}, v27")
        e.I(f"v_sub_u32 v28, 0x200, v27")
        e.I(f"s_cmp_ge_u32 s{sEG}, 4")
        e.I(f"s_cselect_b64 vcc, -1, 0")
        e.I(f"v_cndmask_b32 v27, v27, v28, vcc")
        e.I(f"v_and_b32 v28, 1, v27")
        e.I(f"v_bfe_u32 v29, v27, 1, 7")
        e.I(f"v_lshl_add_u32 v29, v28, 14, v29")
        e.I(f"v_lshlrev_b32 v29, 2, v29")
        e.I(f"v_lshl_add_u32 v29, v24, 19, v29")
        e.I(f"v_mov_b32 v28, 0x40000000")
        e.I(f"v_sub_u32 v30, 15, v25")
        e.I(f"s_cmp_eq_u32 s{sT2}, 0")
        e.I(f"s_cselect_b32 s{sT3}, 1, 0")
        e.I(f"v_sub_u32 v31, 1, v26")
        e.I(f"v_and_b32 v31, s{sT3}, v31")
        e.I(f"v_add_u32 v30, v30, v31")
        e.I(f"v_and_b32 v30, 15, v30")
        e.I(f"v_cndmask_b32 v30, v25, v30, vcc")
        e.I(f"v_cmp_eq_u32 vcc, 0, v27")
        e.I(f"s_add_u32 s{sT3}, s{sT2}, 16")
        e.I(f"s_sub_u32 s{sT0}, 0x80, s{sT2}")
        e.I(f"v_cndmask_b32 v{vYO}, v29, v28, vcc")
        e.I(f"s_and_b32 s{sT0}, s{sT0}, 0x7f")
        e.I(f"s_sub_u32 s{sT1}, 0x80, s{sT3}")
        e.I(f"s_cmp_ge_u32 s{sEG}, 4")
        e.I(f"s_cselect_b32 s{sT0}, s{sT0}, s{sT2}")
        e.I(f"s_cselect_b32 s{sT1}, s{sT1}, s{sT3}")
        e.I(f"s_lshl_b32 s{sT0}, s{sT0}, 9")
        e.I(f"s_lshl_b32 s{sT1}, s{sT1}, 9")
        e.I(f"s_add_u32 s{sY0}, s{sT0}, {WS_Y:#x}")
        e.I(f"s_add_u32 s{sY1}, s{sT1}, {WS_Y:#x}")
        e.I(f"v_lshlrev_b32 v31, 2, v24")
        e.I(f"v_mul_u32_u24 v31, v31, v30")
        e.I(f"v_cmp_eq_u32 vcc, 0, v26")
        for g2 in range(2):
            for r in range(4):
                cst = 8 * g2 + r
                e.I(f"v_mad_u32_u24 v32, v30, {cst}, v31")
                e.I(f"v_cvt_f32_u32 v32, v32")
                e.I(f"v_mul_f32 v32, 0x3d800000, v32")
                e.I(f"v_cos_f32 v33, v32")
                e.I(f"v_sin_f32 v34, v32")
                e.I(f"s_nop 0")
                e.I(f"v_cvt_pk_bf16_f32 v33, v33, v34")
                e.I(f"v_cndmask_b32 v34, 0, v33, vcc")
                e.I(f"v_xor_b32 v33, v33, v34")
                e.I(f"v_accvgpr_write_b32 a{aB2 + 4*g2 + r}, v34")
                e.I(f"v_accvgpr_write_b32 a{aB2 + 8 + 4*g2 + r}, v33")
        e.I(f"v_and_b32 v25, 31, v{vLANE}")
        e.I(f"v_bfe_u32 v26, v{vLANE}, 1, 3")
        e.I(f"v_xor_b32 v26, v26, v24")
        e.I(f"v_lshlrev_b32 v26, 4, v26")
        e.I(f"v_lshl_add_u32 v26, v25, 7, v26")
        e.I(f"s_lshl_b32 s{sT1}, s{sW}, 15")
        e.I(f"s_add_u32 s{sXLDS}, s{sT1}, {LDS_X}")
        e.I(f"v_add_u32 v{vXa[0]}, s{sXLDS}, v26")
        for k in range(1, 4):
            e.I(f"v_xor_b32 v{vXa[k]}, {32*k}, v{vXa[0]}")

    def xphase(self, e):
        for i in range(4):
            e.I(f"v_mov_b32 v{vST[i]}, 0")
        rid = {}

        def stats(q):
            e.wait(lg=rid[q])
            for r in range(16):
                x = vXC + 16 * q + r
                e.I(f"v_dot2c_f32_bf16 v{vST[r&1]}, s{sONES}, v{x}")
                e.I(f"v_dot2c_f32_bf16 v{vST[2+(r&1)]}, v{x}, v{x}")

        for q in range(8):
            e.wait(vm=self.xid[q])
            for k in range(4):
                rid[q] = e.lds(f"ds_read_b128 {vr(vXC + 16*q + 4*k)}, v{vXa[k]} offset:{4096*q}")
            if q:
                stats(q - 1)
        stats(7)
        e.I("s_nop 2")
        e.I(f"v_add_f32 v24, v{vST[0]}, v{vST[1]}")
        e.I(f"v_add_f32 v26, v{vST[2]}, v{vST[3]}")
        e.I(f"v_mov_b32 v25, v24")
        e.I(f"v_mov_b32 v27, v26")
        e.I("s_nop 1")
        e.I("v_permlane32_swap_b32 v24, v25")
        e.I("v_permlane32_swap_b32 v26, v27")
        e.I("v_add_f32 v24, v24, v25")
        e.I("v_add_f32 v26, v26, v27")
        e.I("v_mul_f32 v24, 0x3b000000, v24")
        e.I("v_mul_f32 v26, 0x3b000000, v26")
        e.I(f"v_cvt_pk_bf16_f32 v25, v24, v24")
        e.I(f"v_fma_f32 v26, -v24, v24, v26")
        e.I(f"v_lshlrev_b32 v{vM}, 16, v25")
        e.I("v_max_f32 v26, 0, v26")
        e.I("v_cvt_pk_bf16_f32 v26, v26, v26")
        e.I("v_lshlrev_b32 v26, 16, v26")
        e.I("v_add_f32 v26, 0x3727c5ac, v26")
        e.I("v_cvt_pk_bf16_f32 v26, v26, v26")
        e.I("v_lshlrev_b32 v26, 16, v26")
        e.I("v_sqrt_f32 v26, v26")
        e.I("s_nop 0")
        e.I("v_cvt_pk_bf16_f32 v26, v26, v26")
        e.I("v_lshlrev_b32 v26, 16, v26")
        e.I(f"v_rcp_f32 v{vR}, v26")
        e.I("s_nop 0")
        e.I(f"v_mul_f32 v{vK1}, 0xbfb8aa3b, v{vR}")

    def get_tag(self, e):
        lab, done = self.label("tag"), self.label("tagd")
        e.I(f"s_mov_b32 s{sSPIN}, {self.c['SPIN']}")
        e.L(lab)
        e.wait(vm=self.tagid)
        e.I(f"v_readfirstlane_b32 s{sTAG}, v{vP}")
        e.I("s_nop 0")
        e.I(f"s_cmp_lg_u32 s{sTAG}, 0")
        e.I(f"s_cbranch_scc1 {done}")
        e.I(f"s_sub_u32 s{sSPIN}, s{sSPIN}, 1")
        e.I(f"s_cbranch_scc1 {done}")
        e.I("s_sleep 8")
        e.I(f"buffer_load_dword v{vP}, off, {sr(sDBG)}, 0 sc1")
        e.I("s_waitcnt vmcnt(0)")
        e.I(f"s_branch {lab}")
        e.L(done)

    def issue_tag(self, e):
        self.tagid = e.vmem(f"buffer_load_dword v{vP}, off, {sr(sDBG)}, 0 sc1")

    def put_flag(self, e, off_sgpr):
        lab = self.label("nf")
        e.I(f"s_cmp_lg_u32 s{sW}, 0")
        e.I(f"s_cbranch_scc1 {lab}")
        e.I(f"v_mov_b32 v{vP}, s{sTAG}")
        e.I("s_mov_b64 exec, 1")
        e.I(f"buffer_store_dword v{vP}, off, {sr(sWS)}, s{off_sgpr} sc1")
        e.I("s_mov_b64 exec, -1")
        e.L(lab)

    def poll(self, e, voff, soff_sgpr):
        lab, done = self.label("poll"), self.label("polld")
        e.I(f"s_mov_b32 s{sSPIN}, {self.c['SPIN']}")
        pid = e.vmem(f"buffer_load_dword v{vP}, v{voff}, {sr(sWS)}, s{soff_sgpr} offen sc1")
        return (lab, done, pid, voff, soff_sgpr)

    def poll_finish(self, e, p):
        lab, done, pid, voff, soff = p
        e.wait(vm=pid)
        e.L(lab)
        e.I(f"v_cmp_ne_u32 vcc, s{sTAG}, v{vP}")
        e.I(f"s_cbranch_vccz {done}")
        e.I(f"s_sub_u32 s{sSPIN}, s{sSPIN}, 1")
        e.I(f"s_cbranch_scc1 {done}")
        e.I("s_sleep 4")
        e.I(f"buffer_load_dword v{vP}, v{voff}, {sr(sWS)}, s{soff} offen sc1")
        e.I("s_waitcnt vmcnt(0)")
        e.I(f"s_branch {lab}")
        e.L(done)

    def wd_dma(self, e, k):
        half, kk, slot = k // 14, k % 14, k % 12

        def a():
            e.I(f"s_add_u32 m0, s{sWDL}, {slot*2048}")
            e.I(f"s_add_u32 s{sT2}, s{sCI+kk}, s{sWDB}")
            if half:
                e.I(f"s_add_u32 s{sT2}, s{sT2}, 0x10000")
            e.vmem(f"buffer_load_dwordx4 v{vWdo[0]}, {sr(sWD)}, s{sT2} offen lds")

        def b():
            e.I(f"s_add_u32 m0, s{sWDL}, {slot*2048+1024}")
            e.I(f"s_add_u32 s{sT2}, s{sCI+kk}, s{sWDB}")
            if half:
                e.I(f"s_add_u32 s{sT2}, s{sT2}, 0x10000")
            self.wdid[k] = e.vmem(f"buffer_load_dwordx4 v{vWdo[1]}, {sr(sWD)}, s{sT2} offen lds")
        return [a, b]

    def h_dma(self, e, k):
        half, kk, slot = k // 14, k % 14, k % 8
        e.I(f"s_add_u32 m0, s{sHL}, {slot*2048}")
        e.I(f"s_lshr_b32 s{sT2}, s{sCI+kk}, 4")
        e.I(f"s_add_u32 s{sT2}, s{sT2}, s{sHB}")
        if half:
            e.I(f"s_add_u32 s{sT2}, s{sT2}, 0x1000")
        e.vmem(f"buffer_load_dwordx4 v{vHo[0]}, {sr(sWS)}, s{sT2} offen sc1 lds")
        e.I("s_addk_i32 m0, 0x400")
        e.I("s_nop 0")
        self.hid[k] = e.vmem(f"buffer_load_dwordx4 v{vHo[1]}, {sr(sWS)}, s{sT2} offen sc1 lds")

    def w_dma(self, e, st):
        ps, q, slot = st >> 3, st & 7, st % 4

        def pre():
            e.I(f"s_add_u32 s{sT0}, s{sROT}, {q}")
            e.I(f"s_and_b32 s{sT0}, s{sT0}, 7")
            e.I(f"s_mul_i32 s{sT0}, s{sT0}, 0x38000")
            e.I(f"s_add_u32 s{sT0}, s{sT0}, s{sB1}")
            if ps:
                e.I(f"s_add_u32 s{sT0}, s{sT0}, 0x80")
            e.I(f"s_add_u32 s{sT1}, s{sT0}, 0x7000")

        def mk(i):
            def f():
                if i == 0:
                    pre()
                tau, ee = i >> 1, i & 1
                e.I(f"s_add_u32 m0, s{sLDSW}, {slot*16384 + tau*8192 + ee*1024}")
                e.I("s_nop 0")
                self.wid[st] = e.vmem(f"buffer_load_dwordx4 v{vWo[tau]}, {sr(sA2 if tau else sA1)}, s{sT1 if ee else sT0} offen lds")
            return f
        return [mk(i) for i in range(4)]

    def center_ops(self, kk):
        ops = []
        for p in range(2):
            x0, x1 = vXC + 4 * kk + 2 * p, vXC + 4 * kk + 2 * p + 1
            t = vT + 4 * p
            ops += [f"v_lshlrev_b32 v{t}, 16, v{x0}", f"v_and_b32 v{t+1}, s{sMASK}, v{x0}",
                    f"v_lshlrev_b32 v{t+2}, 16, v{x1}", f"v_and_b32 v{t+3}, s{sMASK}, v{x1}",
                    f"v_sub_f32 v{t}, v{t}, v{vM}", f"v_sub_f32 v{t+1}, v{t+1}, v{vM}",
                    f"v_sub_f32 v{t+2}, v{t+2}, v{vM}", f"v_sub_f32 v{t+3}, v{t+3}, v{vM}",
                    f"v_cvt_pk_bf16_f32 v{x0}, v{t}, v{t+1}", f"v_cvt_pk_bf16_f32 v{x1}, v{t+2}, v{t+3}"]
        return ops

    def glu_ops(self, e, ps, j):
        ops = []
        pk = vRR + 4 * (j & 1)
        for p in range(4):
            t = vT + 8 + 0
            g0, g1, u0, u1 = t, t + 1, t + 2, t + 3
            if ps == 0:
                a = aACC + 16 * j
                ops += [f"v_accvgpr_read_b32 v{g0}, a{a+2*p}", f"v_accvgpr_read_b32 v{g1}, a{a+2*p+1}",
                        f"v_accvgpr_read_b32 v{u0}, a{a+8+2*p}", f"v_accvgpr_read_b32 v{u1}, a{a+8+2*p+1}"]
                sg0, sg1, su0, su1 = g0, g1, u0, u1
            else:
                a = vACC + 16 * j
                sg0, sg1, su0, su1 = a + 2 * p, a + 2 * p + 1, a + 8 + 2 * p, a + 8 + 2 * p + 1
            ops += [f"v_mul_f32 v{g0}, v{vK1}, v{sg0}", f"v_mul_f32 v{g1}, v{vK1}, v{sg1}",
                    f"v_exp_f32 v{g0}, v{g0}", f"v_exp_f32 v{g1}, v{g1}",
                    f"v_mul_f32 v{u0}, v{vR}, v{su0}", f"v_add_f32 v{g0}, 1.0, v{g0}",
                    f"v_add_f32 v{g1}, 1.0, v{g1}",
                    f"v_rcp_f32 v{g0}, v{g0}", f"v_rcp_f32 v{g1}, v{g1}",
                    f"v_mul_f32 v{u1}, v{vR}, v{su1}",
                    f"v_mul_f32 v{u0}, v{u0}, v{g0}", f"v_mul_f32 v{u1}, v{u1}, v{g1}",
                    f"v_cvt_pk_bf16_f32 v{pk+p}, v{u0}, v{u1}"]

        def st():
            self.hst = e.vmem(f"buffer_store_dwordx4 {vr(pk)}, v{vL16}, {sr(sWS)}, s{sHST} offen offset:{(j)*1024} sc1")
        ops.append(st)
        return ops

    def ffn(self, e):
        c = self.c
        LA, NB = c["LA"], c["NB"]
        e.role = "ffn"
        self.wid, self.wdid, self.hid = {}, {}, {}
        srd(e, sA1, sKA + 12, 512 * 1792 * 2)
        srd(e, sA2, sKA + 14, 512 * 1792 * 2)
        e.I(f"v_lshrrev_b32 v24, 3, v{vLANE}")
        e.I(f"v_bfe_u32 v25, v{vLANE}, 1, 2")
        e.I(f"v_bfe_u32 v26, v{vLANE}, 4, 1")
        e.I(f"v_xor_b32 v25, v25, v26")
        e.I(f"v_lshlrev_b32 v25, 5, v25")
        e.I(f"v_and_b32 v26, 1, v{vLANE}")
        e.I(f"v_lshl_add_u32 v25, v26, 4, v25")
        e.I(f"v_mul_u32_u24 v24, 0xe00, v24")
        e.I(f"v_add_u32 v{vWo[0]}, v24, v25")
        e.I(f"v_xor_b32 v25, 64, v25")
        e.I(f"v_add_u32 v{vWo[1]}, v24, v25")
        e.I(f"s_mul_i32 s{sB1}, s{sW}, {16*3584}")
        e.I(f"s_lshl_b32 s{sT0}, s{sCG}, 8")
        e.I(f"s_add_u32 s{sB1}, s{sB1}, s{sT0}")
        e.I(f"s_lshl_b32 s{sLDSW}, s{sW}, 11")
        for st in (0, 1):
            for f in self.w_dma(e, st):
                f()
        self.common_setup(e)
        e.I(f"s_lshl_b32 s{sT0}, s{sRB}, 2")
        e.I(f"s_add_u32 s{sT0}, s{sT0}, s{sW}")
        e.I(f"s_mul_i32 s{sT0}, s{sT0}, 112")
        e.I(f"s_lshl_b32 s{sT1}, s{sCG}, 3")
        e.I(f"s_add_u32 s{sT0}, s{sT0}, s{sT1}")
        e.I(f"s_lshl_b32 s{sT0}, s{sT0}, 10")
        e.I(f"s_add_u32 s{sHST}, s{sT0}, {WS_H:#x}")
        e.I(f"s_lshl_b32 s{sT0}, s{sRB}, 8")
        e.I(f"s_lshl_b32 s{sT1}, s{sCG}, 2")
        e.I(f"s_add_u32 s{sT0}, s{sT0}, s{sT1}")
        e.I(f"s_add_u32 s{sFLG}, s{sT0}, {WS_FLAG:#x}")
        e.I(f"v_lshrrev_b32 v24, 5, v{vLANE}")
        e.I(f"v_bfe_u32 v25, v{vLANE}, 2, 2")
        e.I(f"v_lshl_add_u32 v24, v24, 3, v25")
        e.I(f"v_lshlrev_b32 v24, 7, v24")
        e.I(f"v_bfe_u32 v25, v{vLANE}, 4, 1")
        e.I(f"v_lshl_add_u32 v24, v25, 13, v24")
        e.I(f"v_bfe_u32 v26, v{vLANE}, 3, 2")
        e.I(f"v_lshl_add_u32 v24, v26, 5, v24")
        e.I(f"v_and_b32 v26, 3, v{vLANE}")
        e.I(f"v_lshl_add_u32 v{vWa[0]}, v26, 3, v24")
        for j in range(1, 4):
            e.I(f"v_xor_b32 v{vWa[j]}, {32*j}, v{vWa[0]}")
        self.stamp(e, 1)
        self.xphase(e)
        self.stamp(e, 2)
        for s in self.center_ops(0):
            e.I(s)
        e.wait(vm=self.wid[0])
        e.I("s_barrier")
        dmaq = []
        for st in (2, 3):
            dmaq += self.w_dma(e, st)
        wdq = []
        for k in range(12):
            wdq += self.wd_dma(e, k)
        fill = []
        for kk in range(1, 32):
            fill += [(4 * kk, s) for s in self.center_ops(kk)]
        for _ in range(5):
            e.I(fill.pop(0)[1])
        rd = {}
        flagA_at = None
        for g in range(-LA, 256):
            if g >= 0:
                ps, kk, j = g >> 7, (g >> 2) & 31, g & 3
                while fill and fill[0][0] <= g:
                    op = fill.pop(0)[1]
                    e.I(op) if isinstance(op, str) else op()
                e.wait(lg=rd[g])
                acc = ar(aACC + 16 * j, 16) if ps == 0 else vr(vACC + 16 * j, 16)
                e.I(f"v_mfma_f32_32x32x16_bf16 {acc}, {ar(aFR + 4*(g % NB))}, {vr(vXC + 4*kk)}, {acc if kk else 0}")
                if g == 128:
                    for jj in range(4):
                        fill += [(999, s) for s in self.glu_ops(e, 0, jj)]
                    self.stamp(e, 3)
            r = g + LA
            if r < 256:
                if r % 16 == 0 and r > 0:
                    st = r // 16
                    if flagA_at == st:
                        e.wait(vm=max(self.wid[st], self.hst))
                    else:
                        e.wait(vm=self.wid[st])
                    e.I("s_barrier")
                    if flagA_at == st:
                        self.get_tag(e)
                        self.put_flag(e, sFLG)
                    if st + 2 <= 15 and st >= 2:
                        dmaq += self.w_dma(e, st + 2)
                    if st == 9:
                        self.issue_tag(e)
                stg, k4, j = r >> 4, (r >> 2) & 3, r & 3
                off = (stg % 4) * 16384 + k4 * 2048
                b = aFR + 4 * (r % NB)
                e.lds(f"ds_read_b64_tr_b16 {ar(b, 2)}, v{vWa[j]} offset:{off}")
                rd[r] = e.lds(f"ds_read_b64_tr_b16 {ar(b+2, 2)}, v{vWa[j]} offset:{off+512}")
            if g >= 0:
                if g % 2 == 0:
                    if dmaq:
                        dmaq.pop(0)()
                    elif wdq and g % 4 == 0:
                        wdq.pop(0)()
                nf = 5 if g < 128 else 4
                for _ in range(nf):
                    if fill:
                        op = fill.pop(0)[1]
                        e.I(op) if isinstance(op, str) else op()
                if g > 128 and not fill and flagA_at is None:
                    flagA_at = (g + LA) // 16 + 2
                    assert flagA_at <= 15
        assert not dmaq and not wdq and not fill
        self.stamp(e, 4)
        e.I("s_barrier")
        self.p2_start(e)
        e.I(f"s_add_u32 s{sHST}, s{sHST}, 0x1000")
        e.I(f"s_add_u32 s{sFLG}, s{sFLG}, 0x80")
        for jj in range(4):
            for op in self.glu_ops(e, 1, jj):
                e.I(op) if isinstance(op, str) else op()
        e.wait(vm=self.hst)
        e.I("s_barrier")
        self.put_flag(e, sFLG)
        self.stamp(e, 5)
        e.I("s_branch L_p2") if False else None

    def dft(self, e):
        c = self.c
        LA, NB = c["LA"], c["NB"]
        e.role = "dft"
        self.wdid, self.hid = {}, {}
        e.L("L_dft")
        srd(e, sA1, sKA + 6, 512 * 512 * 2)
        srd(e, sA2, sKA + 8, 512 * 512 * 2)
        e.I(f"s_sub_u32 s{sT3}, s{sCG}, 14")
        vHd = (vWo[0], vWo[1], vWa[0])
        e.I(f"v_lshrrev_b32 v24, 3, v{vLANE}")
        e.I(f"v_and_b32 v25, 7, v{vLANE}")
        e.I(f"v_lshrrev_b32 v26, 1, v24")
        e.I(f"v_xor_b32 v25, v25, v26")
        e.I(f"v_lshlrev_b32 v25, 4, v25")
        e.I(f"v_lshl_add_u32 v{vHd[0]}, v24, 11, v25")
        e.I(f"v_xor_b32 v{vHd[1]}, 64, v{vHd[0]}")
        e.I(f"s_or_b32 s{sT0}, s{sT3}, s{sW}")
        e.I(f"s_cmp_eq_u32 s{sT0}, 0")
        e.I(f"s_cselect_b32 s{sT0}, 0x40000, 0")
        e.I(f"v_mov_b32 v25, s{sT0}")
        e.I(f"v_cmp_eq_u32 vcc, 0, v24")
        e.I(f"s_lshl_b32 s{sB1}, s{sW}, 6")
        e.I(f"s_add_u32 s{sB1}, s{sB1}, s{sT3}")
        e.I(f"v_cndmask_b32 v25, 0, v25, vcc")
        e.I(f"v_add_u32 v{vHd[2]}, v25, v{vHd[0]}")
        e.I(f"s_lshl_b32 s{sB1}, s{sB1}, 10")
        e.I(f"s_lshl_b32 s{sLDSW}, s{sW}, 12")
        hid = {}

        def h_stage(st):
            base = st * 32768

            def mk(i):
                def f():
                    tau, ee = i >> 2, i & 3
                    if i == 0:
                        e.I(f"s_add_u32 s{sT0}, s{sROT}, {st}")
                        e.I(f"s_and_b32 s{sT0}, s{sT0}, 3")
                        e.I(f"s_lshl_b32 s{sT0}, s{sT0}, 7")
                        e.I(f"s_add_u32 s{sT0}, s{sT0}, s{sB1}")
                    e.I(f"s_add_u32 m0, s{sLDSW}, {base + tau*16384 + ee*1024}")
                    e.I(f"s_add_u32 s{sT1}, s{sT0}, {ee*16384}")
                    v = vHd[2] if ee == 0 else vHd[ee & 1]
                    hid[st] = e.vmem(f"buffer_load_dwordx4 v{v}, {sr(sA2 if tau else sA1)}, s{sT1} offen lds")
                return f
            return [mk(i) for i in range(8)]

        for f in h_stage(0):
            f()
        e.I(f"s_mov_b32 s3, s{sT3}")
        self.common_setup(e)
        e.I(f"s_mov_b32 s{sPI}, s3")
        e.I(f"s_lshl_b32 s{sLDSW}, s{sW}, 12")
        for q in range(4):
            e.I(f"s_add_u32 s{sT0}, s{sROT}, {q}")
            e.I(f"s_and_b32 s{sT0}, s{sT0}, 4")
            e.I(f"s_lshl_b32 s{sT0}, s{sT0}, 29")
            e.I(f"s_mul_i32 s{sT0}, s{sT0}, s{sPI}")
            e.I(f"s_or_b32 s{sSGN+q}, s{sT0}, 1.0")
        e.I(f"s_lshl_b32 s{sT0}, s{sPI}, 31")
        e.I(f"s_or_b32 s{sSGN+4}, s{sT0}, 1.0")
        e.I(f"s_lshl_b32 s{sT0}, s{sRB}, 1")
        e.I(f"s_add_u32 s{sT0}, s{sT0}, s{sPI}")
        e.I(f"s_lshl_b32 s{sT1}, s{sT0}, 2")
        e.I(f"s_add_u32 s{sFLG}, s{sT1}, {WS_FLAGD:#x}")
        e.I(f"s_lshl_b32 s{sT0}, s{sT0}, 2")
        e.I(f"s_add_u32 s{sT0}, s{sT0}, s{sW}")
        e.I(f"s_lshl_b32 s{sT0}, s{sT0}, 14")
        e.I(f"s_add_u32 s{sHST}, s{sT0}, {WS_Y:#x}")
        self.stamp(e, 1)
        self.xphase(e)
        self.stamp(e, 2)
        e.I(f"v_lshlrev_b32 v24, 2, v{vLANE}")
        e.I(f"v_add_u32 v24, s{sXLDS}, v24")
        w_id = e.lds(f"ds_write_b32 v24, v{vR}")
        e.I(f"v_lshrrev_b32 v25, 5, v{vLANE}")
        e.I(f"v_lshlrev_b32 v25, 4, v25")
        e.I(f"v_add_u32 v25, s{sXLDS}, v25")
        e.wait(lg=w_id)
        for j in range(4):
            rr = e.lds(f"ds_read_b128 {vr(vRR + 4*j)}, v25 offset:{32*j}")
        e.I(f"s_sub_u32 s{sT0}, 1, s{sPI}")
        e.I(f"v_cvt_f32_u32 v26, s{sT0}")
        e.I(f"v_mul_f32 v26, -2.0, v26")
        e.I(f"v_mul_f32 v{vM}, v26, v{vM}")
        for k in range(4):
            e.I(f"v_subrev_u32 v{vXa[k]}, s{sXLDS}, v{vXa[k]}")

        def prep_ops(kk):
            q = kk >> 2
            ops = []
            for r in range(4):
                a, b = vXC + 4 * kk + r, vXC + 64 + 4 * kk + r
                t = vT + 4 * (r & 1)
                ops += [f"v_lshlrev_b32 v{t}, 16, v{a}", f"v_and_b32 v{t+1}, s{sMASK}, v{a}",
                        f"v_lshlrev_b32 v{t+2}, 16, v{b}", f"v_and_b32 v{t+3}, s{sMASK}, v{b}",
                        f"v_fma_f32 v{t}, v{t+2}, s{sSGN+4}, v{t}", f"v_fma_f32 v{t+1}, v{t+3}, s{sSGN+4}, v{t+1}",
                        f"v_fma_f32 v{t}, v{t}, s{sSGN+q}, v{vM}", f"v_fma_f32 v{t+1}, v{t+1}, s{sSGN+q}, v{vM}",
                        f"v_cvt_pk_bf16_f32 v{a}, v{t}, v{t+1}"]
            return ops

        for s in prep_ops(0):
            e.I(s)
        vCo = vWa[1]
        e.I(f"v_lshrrev_b32 v24, 3, v{vLANE}")
        e.I(f"v_and_b32 v25, 7, v{vLANE}")
        e.I(f"v_and_b32 v26, 2, v24")
        e.I(f"v_lshlrev_b32 v26, 1, v26")
        e.I(f"v_xor_b32 v25, v25, v26")
        e.I(f"v_lshlrev_b32 v25, 4, v25")
        e.I(f"v_lshl_add_u32 v{vCo}, v24, 19, v25")
        e.I(f"s_lshl_b32 s{sB0}, s{sW}, 5")
        e.I(f"s_add_u32 s{sB0}, s{sB0}, s{sRB}")
        e.I(f"s_lshl_b32 s{sB0}, s{sB0}, 12")
        cid = {}

        def c_dma(mat):
            base = 131072 if mat == 0 else 0

            def mk(i):
                def f():
                    half2, kz1, ee = i >> 2, (i >> 1) & 1, i & 1
                    e.I(f"s_add_u32 m0, s{sLDSW}, {base + half2*16384 + kz1*2048 + ee*1024}")
                    e.I(f"s_add_u32 s{sT1}, s{sB0}, {(16*kz1 + 1024*ee)*4096 + half2*128:#x}")
                    cid[mat] = e.vmem(f"buffer_load_dwordx4 v{vCo}, {sr(sSIM if mat else sSRE)}, s{sT1} offen lds")
                return f
            return [mk(i) for i in range(8)]

        e.wait(vm=hid[0], lg=rr)
        e.I("s_barrier")
        dmaq = h_stage(1) + h_stage(2) + h_stage(3) + c_dma(0)
        fill = []
        for kk in range(1, 16):
            fill += [(8 * kk, s) for s in prep_ops(kk)]
        rd = {}

        def acc_d2(t):
            return vr(vACC + 16 * t, 16) if t < 4 else ar(aACC + 16 * (t - 4), 16)

        for g in range(-LA, 128):
            if g >= 0:
                kk, t = g >> 3, g & 7
                while fill and fill[0][0] <= g:
                    e.I(fill.pop(0)[1])
                e.wait(lg=rd[g])
                acc = acc_d2(t)
                e.I(f"v_mfma_f32_32x32x16_bf16 {acc}, {vr(vXC + 4*kk)}, {ar(aFR + 4*(g % NB))}, {acc if kk else 0}")
            r = g + LA
            if r < 128:
                if r % 32 == 0 and r > 0:
                    st = r // 32
                    e.wait(vm=hid[st])
                    e.I("s_barrier")
                    if st == 2:
                        dmaq += c_dma(1)
                        self.issue_tag(e)
                stg, k4, t = r >> 5, (r >> 3) & 3, r & 7
                off = stg * 32768 + (t & 1) * 16384 + (t >> 1) * 4096
                if off >= 65536:
                    if r == 64:
                        for k in range(4):
                            e.I(f"v_add_u32 v{vXa[k]}, 0x10000, v{vXa[k]}")
                    off -= 65536
                rd[r] = e.lds(f"ds_read_b128 {ar(aFR + 4*(r % NB))}, v{vXa[k4]} offset:{off}")
            if g >= 0:
                if dmaq and (g < 24 or g % 2 == 0):
                    dmaq.pop(0)()
                for _ in range(5):
                    if fill:
                        e.I(fill.pop(0)[1])
        assert not dmaq and not fill
        self.stamp(e, 3)
        e.wait(vm=cid[1])
        e.I("s_barrier")
        self.get_tag(e)
        vCa = vWa[2]
        e.I(f"v_lshrrev_b32 v24, 5, v{vLANE}")
        e.I(f"v_bfe_u32 v25, v{vLANE}, 2, 2")
        e.I(f"v_lshl_add_u32 v24, v24, 2, v25")
        e.I(f"v_lshlrev_b32 v24, 7, v24")
        e.I(f"v_bfe_u32 v25, v{vLANE}, 3, 1")
        e.I(f"s_and_b32 s{sT0}, s{sW}, 1")
        e.I(f"v_xor_b32 v25, s{sT0}, v25")
        e.I(f"v_lshl_add_u32 v24, v25, 6, v24")
        e.I(f"v_bfe_u32 v25, v{vLANE}, 4, 1")
        e.I(f"v_lshl_add_u32 v24, v25, 5, v24")
        e.I(f"v_and_b32 v25, 3, v{vLANE}")
        e.I(f"v_lshl_add_u32 v24, v25, 3, v24")
        e.I(f"s_lshr_b32 s{sT0}, s{sW}, 1")
        e.I(f"s_lshl_b32 s{sT0}, s{sT0}, 14")
        e.I(f"v_add_u32 v{vCa}, s{sT0}, v24")
        e.I(f"v_add_u32 v{vWa[3]}, 0x20000, v{vCa}")
        vS, vNS = vXC + 64, vXC + 96
        creads = []
        for kz in range(8):
            for q2 in range(2):
                creads.append(f"ds_read_b64_tr_b16 {vr(vS + 4*kz + 2*q2, 2)}, v{vCa} offset:{kz*2048 + q2*1024}")
        for kz in range(8):
            for q2 in range(2):
                creads.append(f"ds_read_b64_tr_b16 {ar(aCC + 4*kz + 2*q2, 2)}, v{vWa[3]} offset:{kz*2048 + q2*1024}")
        vZw = vWo[0]
        e.I(f"s_lshl_b32 s{sT0}, s{sW}, 11")
        e.I(f"v_add_u32 v{vZw}, s{sT0}, v{vL16}")

        def z_ops(t):
            ops = []
            base = 32768 if t < 4 else 0
            for k1 in range(2):
                pk = vXC + 4 * ((2 * t + k1) & 3)
                for p in range(4):
                    r0 = 8 * k1 + 2 * p
                    t0 = vT + 2 * (p & 1)
                    if t < 4:
                        s0, s1 = vACC + 16 * t + r0, vACC + 16 * t + r0 + 1
                    else:
                        ops += [f"v_accvgpr_read_b32 v{t0}, a{aACC + 16*(t-4) + r0}", f"v_accvgpr_read_b32 v{t0+1}, a{aACC + 16*(t-4) + r0 + 1}"]
                        s0, s1 = t0, t0 + 1
                    ops += [f"v_mul_f32 v{t0}, v{vRR + r0}, v{s0}", f"v_mul_f32 v{t0+1}, v{vRR + r0 + 1}, v{s1}",
                            f"v_cvt_pk_bf16_f32 v{pk+p}, v{t0}, v{t0+1}"]

                def wr(pk=pk, k1=k1):
                    self.zw = e.lds(f"ds_write_b128 v{vZw}, {vr(pk)} offset:{base + (t & 3)*8192 + k1*1024}")
                ops.append(wr)
            return ops

        zo = []
        for t in range(4):
            zo += z_ops(t)
        clast = None
        n = 0
        for op in zo:
            e.I(op) if isinstance(op, str) else op()
            n += 1
            if n % 3 == 0 and creads:
                clast = e.lds(creads.pop(0))
        while creads:
            clast = e.lds(creads.pop(0))
        e.wait(lg=e.lg - 1)
        e.I(f"s_mov_b32 s{sT3}, 0x80008000")
        for i in range(32):
            e.I(f"v_xor_b32 v{vNS + i}, s{sT3}, v{vS + i}")
        e.I("s_barrier")
        self.stamp(e, 4)
        wdq = []
        for k in range(12):
            wdq += self.wd_dma(e, k)
        vYs = vWo[1]
        e.I(f"v_lshrrev_b32 v24, 5, v{vLANE}")
        e.I(f"v_and_b32 v25, 31, v{vLANE}")
        e.I(f"v_lshlrev_b32 v25, 2, v25")
        e.I(f"v_lshl_add_u32 v{vYs}, v24, 11, v25")

        def y_ops(beta):
            ops = []
            aR = vACC + 32 * (beta & 1)
            for r in range(16):
                t0 = vXC + 16 + (r & 7)
                ops.append(f"v_cvt_pk_bf16_f32 v{t0}, v{aR + r}, v{aR + 16 + r}")
                if r % 4 == 0:
                    ops.append(f"s_add_u32 s{sT3}, s{sHST}, {(r >> 2)*4096 + beta*128}")

                def st(t0=t0, r=r):
                    self.yst = e.vmem(f"buffer_store_dword v{t0}, v{vYs}, {sr(sWS)}, s{sT3} offen offset:{(r & 3)*512} sc1")
                ops.append(st)
            return ops

        fill = []
        for t in range(4, 8):
            fill += z_ops(t)
        rd = {}
        NF = 64
        LF = 4
        for g in range(-2 * LF, 128):
            if g >= 0:
                beta, kz, i = g >> 5, (g >> 2) & 7, g & 3
                fp = (beta * 8 + kz) * 2
                aR, aI = vr(vACC + 32 * (beta & 1), 16), vr(vACC + 32 * (beta & 1) + 16, 16)
                P, Q = ar(aFR + 4 * (fp % NB)), ar(aFR + 4 * ((fp + 1) % NB))
                Cc, S, NS = ar(aCC + 4 * kz), vr(vS + 4 * kz), vr(vNS + 4 * kz)
                if i == 0:
                    e.wait(lg=rd[fp])
                    e.I(f"v_mfma_f32_32x32x16_bf16 {aR}, {Cc}, {P}, {aR if kz else 0}")
                elif i == 1:
                    e.I(f"v_mfma_f32_32x32x16_bf16 {aI}, {S}, {P}, {aI if kz else 0}")
                elif i == 2:
                    e.wait(lg=rd[fp + 1])
                    e.I(f"v_mfma_f32_32x32x16_bf16 {aR}, {NS}, {Q}, {aR}")
                else:
                    e.I(f"v_mfma_f32_32x32x16_bf16 {aI}, {Cc}, {Q}, {aI}")
                if g % 32 == 5 and beta >= 1:
                    fill = y_ops(beta - 1) + fill
            if g % 2 == 1 or g < 0 and g % 2 == 1:
                f = (g + 1) // 2 + LF - 1 + 0
                if 0 <= f < NF and f not in rd:
                    if f == 32:
                        while any(not isinstance(o, str) and o.__name__ == "wr" for o in fill):
                            op = fill.pop(0)
                            e.I(op) if isinstance(op, str) else op()
                        e.wait(lg=self.zw)
                        e.I("s_barrier")
                    beta, kz, pq = f >> 4, (f >> 1) & 7, f & 1
                    base = 32768 if beta < 2 else 0
                    rd[f] = e.lds(f"ds_read_b128 {ar(aFR + 4*(f % NB))}, v{vL16} offset:{base + ((beta & 1)*2 + pq)*8192 + kz*1024}")
            if g >= 0:
                if wdq and g % 4 == 2:
                    wdq.pop(0)()
                for _ in range(4):
                    if fill:
                        op = fill.pop(0)
                        e.I(op) if isinstance(op, str) else op()
        assert not fill and not wdq, (len(fill), len(wdq))
        e.I("s_barrier")
        self.p2_start(e)
        for op in y_ops(3):
            e.I(op) if isinstance(op, str) else op()
        e.wait(vm=self.yst)
        e.I("s_barrier")
        self.put_flag(e, sFLG)
        self.stamp(e, 5)

    def p2_start(self, e):
        e.I(f"s_lshl_b32 s{sT3}, s{sRB2}, 8")
        e.I(f"s_add_u32 s{sT3}, s{sT3}, {WS_FLAG:#x}")
        p = self.poll(e, vFO, sT3)
        self.poll_finish(e, p)
        for k in range(8):
            self.h_dma(e, k)

    def phase2(self, e):
        c = self.c
        FB = vXC
        vYA = vXC + 48
        vXR = vXC + 64
        vS2 = vXC + 72
        vRD = vXC + 88
        rd = {}

        def reads(k):
            e.wait(vm=max(self.wdid[k], self.hid[k]))
            b = FB + 16 * (k % 3)
            so, ho = (k % 12) * 2048, (k % 8) * 2048
            ids = []
            for a in range(2):
                e.lds(f"ds_read_b64_tr_b16 {vr(b + 4*a, 2)}, v{vWdA[a]} offset:{so}")
                ids.append(e.lds(f"ds_read_b64_tr_b16 {vr(b + 4*a + 2, 2)}, v{vWdA[a]} offset:{so + 1024}"))
                ids.append(e.lds(f"ds_read_b128 {vr(b + 8 + 4*a)}, v{vHA} offset:{ho + 1024*a}"))
            rd[k] = ids

        hnext = 8
        gotB = False
        reads(0)
        for k in range(28):
            if k + 1 < 28:
                if k + 1 not in self.hid:
                    raise AssertionError("h not issued")
                reads(k + 1)
            b = FB + 16 * (k % 3)
            for a in range(4):
                am, bm = a & 1, a >> 1
                e.wait(lg=max(rd[k][2 * am], rd[k][2 * bm + 1]))
                acc = vr(vACC + 16 * a, 16)
                e.I(f"v_mfma_f32_32x32x16_bf16 {acc}, {vr(b + 4*am)}, {vr(b + 8 + 4*bm)}, {acc if k else 0}")
            if k + 12 < 28:
                for f in self.wd_dma(e, k + 12):
                    f()
            if k == c["KPOLL"]:
                e.I(f"s_lshl_b32 s{sT3}, s{sRB2}, 8")
                e.I(f"s_add_u32 s{sT3}, s{sT3}, {WS_FLAG + 128:#x}")
                p = self.poll(e, vFO, sT3)
                self.poll_finish(e, p)
                gotB = True
                self.stamp(e, 6)
            while hnext < 28 and hnext <= k + 8 and (hnext < 14 or gotB):
                self.h_dma(e, hnext)
                hnext += 1
            if k == c["KPOLLY"]:
                e.I(f"v_and_b32 v24, 31, v{vLANE}")
                e.I(f"v_lshlrev_b32 v24, 2, v24")
                e.I(f"s_mov_b32 s{sT3}, {WS_FLAGD:#x}")
                p = self.poll(e, 24, sT3)
                self.poll_finish(e, p)
                for k2 in range(4):
                    for r in range(4):
                        e.I(f"s_add_u32 s{sT3}, s{sY1 if k2 >> 1 else sY0}, {(8*(k2 & 1) + r)*131072:#x}")
                        yid = e.vmem(f"buffer_load_dword v{vYA + 4*k2 + r}, v{vYO}, {sr(sWS)}, s{sT3} offen sc1")
                e.vmem(f"buffer_load_dwordx4 {vr(vXR)}, v{vOO}, {sr(sX)}, s{sOUTB} offen")
                xid = e.vmem(f"buffer_load_dwordx4 {vr(vXR + 4)}, v{vOO}, {sr(sX)}, s{sOUTB} offen offset:16")
        self.stamp(e, 7)
        e.wait(vm=yid)
        for k2 in range(4):
            e.I(f"v_mfma_f32_32x32x16_bf16 {vr(vS2, 16)}, {vr(vYA + 4*k2)}, {ar(aB2 + 4*k2)}, {vr(vS2, 16) if k2 else 0}")
        e.I("s_nop 7")
        for a in range(1, 4):
            for q in range(4):
                e.lds(f"ds_write_b128 v{vHA}, {vr(vACC + 16*a + 4*q)} offset:{(a-1)*4096 + q*1024}")
        for a in range(1, 4):
            e.I(f"v_xor_b32 v{24+a}, {a << 14:#x}, v{vHA}")
        e.wait(lg=e.lg - 1)
        e.I("s_barrier")
        rr = {}
        for q in range(4):
            for a in range(1, 4):
                rr[(a, q)] = e.lds(f"ds_read_b128 {vr(FB + 16*(a-1) + 4*q)}, v{24+a} offset:{(a-1)*4096 + q*1024}")
        e.wait(vm=xid)
        vO = vXC + 96
        for q in range(4):
            e.wait(lg=rr[(3, q)])
            d = [vACC + 4 * q + i for i in range(4)]
            for a in range(3):
                for i in range(4):
                    e.I(f"v_add_f32 v{d[i]}, v{d[i]}, v{FB + 16*a + 4*q + i}")
            t = [28 + i for i in range(4)]
            for i in range(4):
                e.I(f"v_mul_f32 v{t[i]}, 0xbfb8aa3b, v{d[i]}")
            for i in range(4):
                e.I(f"v_exp_f32 v{t[i]}, v{t[i]}")
            xr = vXR + 2 * q
            e.I(f"v_lshlrev_b32 v32, 16, v{xr}")
            for i in range(4):
                e.I(f"v_add_f32 v{t[i]}, 1.0, v{t[i]}")
            for i in range(4):
                e.I(f"v_rcp_f32 v{t[i]}, v{t[i]}")
            e.I(f"v_and_b32 v33, s{sMASK}, v{xr}")
            e.I(f"v_lshlrev_b32 v34, 16, v{xr+1}")
            e.I(f"v_and_b32 v35, s{sMASK}, v{xr+1}")
            for i in range(4):
                e.I(f"v_mul_f32 v{d[i]}, v{d[i]}, v{t[i]}")
            for i in range(4):
                e.I(f"v_fma_f32 v{d[i]}, v{d[i]}, v{vS2 + 4*q + i}, v{32+i}")
            e.I(f"v_cvt_pk_bf16_f32 v{vO + 2*q}, v{d[0]}, v{d[1]}")
            e.I(f"v_cvt_pk_bf16_f32 v{vO + 2*q + 1}, v{d[2]}, v{d[3]}")
            if q & 1:
                e.vmem(f"buffer_store_dwordx4 {vr(vO + 4*(q >> 1))}, v{vOO}, {sr(sOUT)}, s{sOUTB} offen offset:{16*(q >> 1)}")
        if c["STAMP"]:
            self.stamp(e, 8)
            e.I(f"s_memrealtime s[{sST}:{sST+1}]")
            e.I("s_waitcnt lgkmcnt(0)")
            e.I(f"v_writelane_b32 v{self.vSTAMP}, s{sST}, 9")
            e.I(f"s_lshl_b32 s{sT0}, s2, 2")
            e.I(f"s_add_u32 s{sT0}, s{sT0}, s{sW}")
            e.I(f"s_lshl_b32 s{sT0}, s{sT0}, 6")
            e.I(f"s_add_u32 s{sT0}, s{sT0}, {WS_STAMP:#x}")
            e.I(f"v_lshlrev_b32 v24, 2, v{vLANE}")
            e.I("s_mov_b64 exec, 0xffff")
            e.I(f"buffer_store_dword v{self.vSTAMP}, v24, {sr(sWS)}, s{sT0} offen")
        e.I("s_endpgm")

    def build(self):
        e0 = Emit()
        self.prologue(e0)
        ef = e0.fork()
        self.ffn(ef)
        self.phase2(ef)
        ed = e0.fork()
        self.dft(ed)
        self.phase2(ed)
        errs = check_hazards(e0.lines + ef.lines, "ffn") + check_hazards(e0.lines + ed.lines, "dft")
        for x in errs:
            print("HAZARD", x, file=sys.stderr)
        hdr = open(os.path.join(os.path.dirname(os.path.abspath(__file__)), "header.txt")).read()
        body = e0.text() + ef.text() + "L_ffn_end:\n" + ed.text() + "L_dft_end:\nL_end:\n    s_endpgm\n"
        txt = hdr + f"""; @launch grid=(256,1,1) block=(256,1,1) lds=163840
.amdgcn_target "amdgcn-amd-amdhsa--gfx950"
.text
.globl {NAME}
.p2align 8
.type {NAME},@function
{NAME}:
{body}.section .rodata,"a"
.p2align 6
.amdhsa_kernel {NAME}
  .amdhsa_next_free_vgpr 512
  .amdhsa_next_free_sgpr 102
  .amdhsa_accum_offset 256
  .amdhsa_group_segment_fixed_size 0
  .amdhsa_kernarg_size 96
  .amdhsa_user_sgpr_count 2
  .amdhsa_user_sgpr_kernarg_segment_ptr 1
  .amdhsa_system_sgpr_workgroup_id_x 1
.end_amdhsa_kernel
"""
        return txt, errs


if __name__ == "__main__":
    cfg = dict(CFG)
    out = "k.s"
    for a in sys.argv[1:]:
        if "=" in a:
            k, v = a.split("=")
            cfg[k] = int(v)
        else:
            out = a
    txt, errs = Gen(cfg).build()
    open(out, "w").write(txt)
    print("wrote", out, len(txt), "bytes;", len(errs), "hazards")
```
